```python
import torch

def _softmax(x, axis=-1):
    return torch.softmax(x, dim=axis)
def _gelu(x):
    return torch.nn.functional.gelu(x, approximate="tanh")
def _silu(x):
    return torch.nn.functional.silu(x)
def _sigmoid(x):
    return torch.sigmoid(x)
def _layernorm(x, axis=-1, eps=1e-5):
    m = x.mean(dim=axis, keepdim=True)
    v = x.var(dim=axis, keepdim=True, unbiased=False)
    return (x - m) / torch.sqrt(v + eps)
def _scatter_add(tgt, idx, src, axis=0):
    return tgt.clone().index_add_(axis, idx, src)
def _segment_sum(src, seg, n):
    out = torch.zeros((n,) + src.shape[1:], dtype=src.dtype)
    return out.index_add_(0, seg, src)
def _pad(x, pw):
    flat = tuple(v for pair in reversed(pw) for v in pair)
    return torch.nn.functional.pad(x, flat)

kernel_name = 'recurrent_scan__softmax_full_mha__dense_activation_relu__prompt'

def setup_inputs():

    _w = (lambda a: (lambda t: t.to(torch.bfloat16) if t.is_floating_point() else t)(torch.as_tensor(a)))
    def _A_setup():
        B, S, D = 1, 2048, 512
        return {
            "x": _w((lambda *s: torch.randn(*s, dtype=torch.bfloat16) * 0.05)(B, S, D)),
            "wqkv": _w((lambda *s: torch.randn(*s, dtype=torch.bfloat16) * 0.05)(D, 3 * D)),
            "wo": _w((lambda *s: torch.randn(*s, dtype=torch.bfloat16) * 0.05)(D, D)),
        }
    _A_in = _A_setup()

    def _B_setup():
        B, S, D, Dff = 1, 2048, 512, 1792
        return {
            "x": _w((lambda *s: torch.randn(*s, dtype=torch.bfloat16) * 0.05)(B, S, D)),
            "w1": _w((lambda *s: torch.randn(*s, dtype=torch.bfloat16) * 0.05)(D, Dff)),
            "w2": _w((lambda *s: torch.randn(*s, dtype=torch.bfloat16) * 0.05)(Dff, D)),
        }
    _B_in = _B_setup()

    return {
        "A_x": _A_in["x"],
        "A_wqkv": _A_in["wqkv"],
        "A_wo": _A_in["wo"],
        "B_x": _B_in["x"],
        "B_w1": _B_in["w1"],
        "B_w2": _B_in["w2"],
    }

def reference(A_x, A_wqkv, A_wo, B_x, B_w1, B_w2):
    def _A_ref(x, wqkv, wo):
        B, S, D = x.shape
        H = 32; Dh = D // H
        qkv = (lambda x, *d: x.permute(*d))((x @ wqkv).reshape(B, S, 3, H, Dh), 2, 0, 3, 1, 4)
        q, k, v = qkv[0], qkv[1], qkv[2]
        scale = Dh ** -0.5
        scores = torch.einsum("bhqd,bhkd->bhqk", q, k) * scale
        p = _softmax(scores, axis=-1)
        o = torch.einsum("bhqk,bhkd->bhqd", p, v)
        return (lambda x, *d: x.permute(*d))(o, 0, 2, 1, 3).reshape(B, S, D) @ wo

    def _B_ref(x, w1, w2):
        h = torch.einsum("bsd,df->bsf", x, w1)
        zero = torch.zeros_like(h)
        h = torch.maximum(h, zero)
        return torch.einsum("bsf,fd->bsd", h, w2)

    x = A_x
    xn = _layernorm(x, axis=-1)
    s = _A_ref(xn, A_wqkv, A_wo)
    g = _silu(_B_ref(xn, B_w1, B_w2))
    return x + s * g
```

```python
import re

TRANS=("v_exp_f32","v_log_f32","v_rcp_f32","v_rsq_f32","v_sqrt_f32","v_sin_f32","v_cos_f32","v_rcp_iflag_f32","v_exp_f16","v_rcp_f16")
reg_re=re.compile(r'^(-|\|)?([vsa])(\d+)\|?$')
rng_re=re.compile(r'^(-|\|)?([vsa])\[(\d+):(\d+)\]\|?$')

def regs_of(tok):
    tok=tok.strip()
    if tok.startswith("abs(") and tok.endswith(")"): tok=tok[4:-1]
    if tok.startswith("-abs(") and tok.endswith(")"): tok=tok[5:-1]
    m=reg_re.match(tok)
    if m: return [(m.group(2),int(m.group(3)))]
    m=rng_re.match(tok)
    if m: return [(m.group(2),i) for i in range(int(m.group(3)),int(m.group(4))+1)]
    if tok=="vcc": return [("s","vcc_lo"),("s","vcc_hi")]
    if tok in("vcc_lo","vcc_hi"): return [("s",tok)]
    if tok=="exec": return [("s","exec_lo"),("s","exec_hi")]
    if tok in ("exec_lo","exec_hi"): return [("s",tok)]
    if tok=="m0": return [("s","m0")]
    return []

class Ins:
    def __init__(self,text):
        self.text=text
        t=text.split(";")[0].strip()
        self.label=None; self.op=None; self.kind=None
        self.w=set(); self.r=set(); self.srcC=set(); self.srcAB=set(); self.data=set()
        self.target=None; self.states=1
        if not t or t.startswith("."):
            self.kind="dir"; self.states=0; return
        if t.endswith(":"):
            self.kind="label"; self.label=t[:-1]; self.states=0; return
        p=t.split(None,1); op=p[0]; self.op=op
        rest=p[1] if len(p)>1 else ""
        toks=[x.strip() for x in rest.split(",")] if rest else []
        mods=""
        if toks:
            q=toks[-1].split(None,1)
            toks[-1]=q[0]
            if len(q)>1: mods=q[1]
        self.mods=mods
        R=[regs_of(x) for x in toks]
        base=re.sub(r'_(e32|e64|dpp|sdwa)$','',op)
        self.base=base
        if op.startswith("v_mfma") or op.startswith("v_smfmac"):
            self.kind="mfma"; self.w=set(R[0]); self.srcAB=set(R[1])|set(R[2]); self.srcC=set(R[3]) if len(R)>3 else set()
            self.r=self.srcAB|self.srcC
            self.passes=8 if "32x32x16" in op else (4 if "16x16x32" in op else 16)
            self.dlist=R[0]; self.clist=R[3] if len(R)>3 else []
        elif op.startswith("v_"):
            self.kind="valu"
            if base.startswith("v_cmp"):
                self.w=set(R[0]); self.r=set().union(*R[1:]) if len(R)>1 else set()
                if base.startswith("v_cmpx"): self.w|=set(regs_of("exec"))
            elif base in("v_permlane32_swap_b32","v_permlane16_swap_b32","v_swap_b32"):
                self.w=set(R[0])|set(R[1]); self.r=set(self.w)
            elif base in ("v_add_co_u32","v_sub_co_u32","v_addc_co_u32","v_subb_co_u32","v_div_scale_f32","v_mad_u64_u32"):
                self.w=set(R[0])|set(R[1]); self.r=set().union(*R[2:])
            else:
                self.w=set(R[0]); self.r=set().union(*R[1:]) if len(R)>1 else set()
                if base in("v_fmac_f32","v_dot2c_f32_bf16","v_pk_fmac_f16","v_writelane_b32") : self.r|=set(R[0])
                if "dst_unused:UNUSED_PRESERVE" in mods: self.r|=set(R[0])
            if base=="v_cndmask_b32" and len(toks)==3: self.r|=set(regs_of("vcc"))
            self.trans=base in TRANS
            self.dot=base.startswith("v_dot")
            self.dotC=set(R[3]) if (self.dot and len(R)>3) else (set(R[0]) if self.dot else set())
            self.dpp=op.endswith("_dpp") or "row_" in mods or "quad_perm" in mods or "wave_" in mods
            self.perm=base.startswith("v_permlane")
            self.rdlane=base in("v_readlane_b32","v_readfirstlane_b32")
            self.sdwa=op.endswith("_sdwa") and "dst_sel:DWORD" not in mods and "dst_sel" in mods
        elif op.startswith("buffer_") or op.startswith("global_"):
            self.kind="vmem"
            lds=(" lds" in " "+mods) or "_lds_" in op
            self.lds=lds
            if op.startswith("buffer_"):
                if op.startswith("buffer_wbl2") or op.startswith("buffer_inv"):
                    pass
                elif lds: self.r=set().union(*R)|{("s","m0")}
                elif "load" in op: self.w=set(R[0]); self.r=set().union(*R[1:])
                else:
                    self.data=set(R[0]); self.r=set().union(*R)
                    if "atomic" in op and "sc0" in mods: self.w=set(R[0])
            else:
                if lds: self.r=set().union(*R)|{("s","m0")}
                elif "load" in op: self.w=set(R[0]); self.r=set().union(*R[1:])
                elif "atomic" in op and "sc0" in mods: self.w=set(R[0]); self.r=set().union(*R[1:]); self.data=set(R[2])
                else: self.data=set(R[1]); self.r=set().union(*R)
            self.wide=("x4" in op or "x3" in op) and ("store" in op)
        elif op.startswith("ds_"):
            self.kind="ds"
            if op.startswith("ds_read") or "permute" in op or "swizzle" in op or "_rtn" in op:
                self.w=set(R[0]); self.r=set().union(*R[1:]) if len(R)>1 else set()
            else: self.r=set().union(*R)
        elif op.startswith("s_load") or op.startswith("s_buffer_load") or op in("s_memtime","s_memrealtime"):
            self.kind="smem"; self.w=set(R[0]); self.r=set().union(*R[1:]) if len(R)>1 else set()
        elif op=="s_nop":
            self.kind="nop"; self.states=int(toks[0],0)+1
        elif op=="s_branch":
            self.kind="br"; self.target=toks[0]
        elif op.startswith("s_cbranch"):
            self.kind="cbr"; self.target=toks[0]
            if "vcc" in op: self.r=set(regs_of("vcc"))
            if "exec" in op: self.r=set(regs_of("exec"))
        elif op=="s_endpgm": self.kind="end"
        elif op in("s_waitcnt","s_barrier","s_setprio","s_sleep","s_sethalt"): self.kind="misc"
        elif op.startswith("s_cmp") or op.startswith("s_bitcmp"):
            self.kind="salu"; self.r=set().union(*R)
        elif op.startswith("s_"):
            self.kind="salu"; self.w=set(R[0]); self.r=set().union(*R[1:]) if len(R)>1 else set()
            if "saveexec" in op: self.w|=set(regs_of("exec")); self.r|=set(regs_of("exec"))
            if op in("s_addk_i32","s_mulk_i32"): self.r|=set(R[0])
        else:
            raise ValueError("unknown instr: "+text)

def vonly(s): return {x for x in s if x[0] in "va"}
def sonly(s): return {x for x in s if x[0]=="s"}

def need(p,c):
    n=0
    if p.kind=="valu":
        pv=vonly(p.w); ps=sonly(p.w)
        if c.kind=="mfma" and pv&c.r: n=max(n,2)
        if c.kind=="valu":
            if p.trans and not c.trans and pv&c.r: n=max(n,1)
            if p.trans and c.trans and pv&c.r: n=max(n,1)
            if c.rdlane and pv&c.r: n=max(n,1)
            if (c.perm or c.dpp) and pv&c.r: n=max(n,2)
            if p.sdwa and pv&(c.r|c.w): n=max(n,1)
            if ps&c.r:
                n=max(n,4 if (c.base in("v_readlane_b32","v_writelane_b32","v_div_fmas_f32")) else 2)
            if p.dot and pv&(c.r|c.w):
                if c.base==p.base and c.dot and pv&c.dotC and not (pv&(c.r-c.dotC)): pass
                else: n=max(n,3)
            if ("s","exec_lo") in ps:
                if c.dpp: n=max(n,5)
                if c.rdlane or c.perm: n=max(n,4)
        if p.dot and c.kind in("mfma","vmem","ds") and pv&(c.r|c.w): n=max(n,3)
        if c.kind=="vmem" and ps&c.r: n=max(n,5)
        if c.kind=="mfma" and ("s","exec_lo") in ps: n=max(n,4)
        if c.kind in("salu","cbr") and ps&c.r: n=max(n,1 if c.kind=="salu" else 1)
        if p.trans and c.kind in ("vmem","ds") and pv&c.r: n=max(n,1)
    if p.kind=="mfma":
        big={8:(10,12,7),4:(6,8,3),16:(18,20,15)}[p.passes]
        if c.kind=="mfma":
            if p.w&c.srcC:
                if not (p.dlist==c.clist and p.passes==c.passes): n=max(n,big[0])
            if p.w&c.srcAB: n=max(n,big[1])
            if p.w&c.w and not (p.w&c.srcC):
                n=max(n,big[0] if p.dlist!=c.dlist else 0)
        elif c.kind in("valu","vmem","ds"):
            if p.w&(c.r|c.w): n=max(n,big[1])
            if c.kind=="valu" and p.srcC&c.w: n=max(n,big[2])
            if c.kind in("vmem","ds") and p.srcC&c.w: n=max(n,big[2])
    if p.kind=="salu" and ("s","m0") in p.w and c.kind=="vmem" and c.lds: n=max(n,1)
    if p.kind=="vmem" and getattr(p,"wide",False) and p.data&c.w:
        n=max(n,2 if c.kind in("valu","mfma") else 1)
    return n

def fix_hazards(lines, verbose=False, name=""):
    total=0
    while True:
        ins=[Ins(l) for l in lines]
        labels={x.label:i for i,x in enumerate(ins) if x.kind=="label"}
        preds=[[] for _ in ins]
        for i,x in enumerate(ins):
            if x.kind in("br","cbr"):
                if x.target in labels: preds[labels[x.target]].append(i)
            if x.kind not in("br","end") and i+1<len(ins): preds[i+1].append(i)
        found=None
        for i,c in enumerate(ins):
            if c.kind in("dir","label","nop","misc","br","end"): continue
            worst=0; who=None
            stack=[(j,0) for j in preds[i]]; seen={}
            while stack:
                j,d=stack.pop()
                if d>=20: continue
                if seen.get(j,99)<=d: continue
                seen[j]=d
                p=ins[j]
                if p.kind in("valu","mfma","salu","vmem"):
                    n=need(p,c)
                    if n-d>worst: worst=n-d; who=p
                for k in preds[j]: stack.append((k,d+p.states))
            if worst>0:
                found=(i,worst,who,c); break
        if not found: break
        i,worst,who,c=found
        if verbose: print(f"[{name}] +{worst} nop: {who.text.strip()}  ->  {c.text.strip()}")
        lines=lines[:i]+[f"  s_nop {worst-1}"]+lines[i:]
        total+=1
    return lines,total

class Kern:
    def __init__(self,name,vgpr,sgpr=102,agpr=0):
        self.name=name; self.l=[]; self.vgpr=vgpr; self.sgpr=sgpr; self.agpr=agpr; self.uid=0
    def __call__(self,s):
        for x in s.split("\n"):
            x=x.strip()
            if not x: continue
            self.l.append(x if x.endswith(":") else "  "+x)
    def lab(self,base):
        self.uid+=1; return f"{self.name}_{base}{self.uid}"
    def text(self,verbose=False):
        lines,n=fix_hazards_fast(self.l,verbose,self.name)
        acc=(self.vgpr+3)//4*4
        s=f".text\n.globl {self.name}\n.p2align 8\n.type {self.name},@function\n{self.name}:\n"+"\n".join(lines)+"\n"
        kd=f""".section .rodata,"a"
.p2align 6
.amdhsa_kernel {self.name}
  .amdhsa_next_free_vgpr {acc+self.agpr if self.agpr else self.vgpr}
  .amdhsa_next_free_sgpr {self.sgpr}
  .amdhsa_accum_offset {acc}
  .amdhsa_group_segment_fixed_size 0
  .amdhsa_kernarg_size 72
  .amdhsa_user_sgpr_count 2
  .amdhsa_user_sgpr_kernarg_segment_ptr 1
  .amdhsa_system_sgpr_workgroup_id_x 1
  .amdhsa_float_denorm_mode_32 3
.end_amdhsa_kernel
"""
        mv=-1; ms=-1
        for x in lines:
            i=Ins(x)
            for t,n_ in (i.w|i.r):
                if t=="v": mv=max(mv,n_)
                if t=="s" and isinstance(n_,int): ms=max(ms,n_)
        assert mv<self.vgpr, (self.name,"vgpr",mv)
        assert ms<self.sgpr, (self.name,"sgpr",ms)
        self.maxv=mv; self.maxs=ms; self.nnops=n; self.ninstr=len(lines)
        return s+kd

def fix_hazards_fast(lines,verbose,name):
    out=[]; parsed=[]; n=0
    for l in lines:
        c=Ins(l)
        if c.kind not in("dir","label","nop","misc","br","end"):
            d=0; worst=0; who=None
            for p in reversed(parsed):
                if d>=20 or p.kind in("br","end"): break
                if p.kind in("valu","mfma","salu","vmem"):
                    k=need(p,c)
                    if k-d>worst: worst=k-d; who=p
                d+=p.states
            if worst>0:
                if verbose: print(f"[{name}] +{worst} nop: {who.text.strip()}  ->  {c.text.strip()}")
                t=f"  s_nop {worst-1}"; out.append(t); parsed.append(Ins(t)); n+=1
        out.append(l); parsed.append(c)
    out,m=fix_hazards(out,verbose,name)
    return out,n+m
```

```python
import sys
from asmlib import Kern

NAME="recurrent_scan__softmax_full_mha__dense_activation_relu__prompt"
QF=0x000000; KV=0x200000; XN=0x600000; OF=0x800000; FP=0xA00000; WS_END=0x1800000
ONES=0x3F803F80
def f2u(x):
    import struct; return struct.unpack("<I",struct.pack("<f",x))[0]
LOG2E=1.4426950408889634

class VM:
    def __init__(s,k): s.k=k; s.q=[]
    def issue(s,text,tag=None): s.k(text); s.q.append(tag)
    def count(s,tag):
        idx=[i for i,t in enumerate(s.q) if t==tag]
        if not idx: return None
        return len(s.q)-1-idx[-1]
    def wait(s,tag,extra=""):
        n=s.count(tag)
        if n is None:
            if extra: s.k(f"s_waitcnt {extra}")
            return
        assert n<=63
        s.k(f"s_waitcnt vmcnt({n}) {extra}")
        s.q=s.q[len(s.q)-n:] if n else []

def srd(k,d,p,size):
    k(f"s_mov_b32 s{d}, s{p}\ns_and_b32 s{d+1}, s{p+1}, 0xffff\ns_mov_b32 s{d+2}, {hex(size)}\ns_mov_b32 s{d+3}, 0x20000")
def vr(a,n): return f"v[{a}:{a+n-1}]"
def mfma(k,d,a,b,c=None):
    cc = "0" if c=="0" else vr(d if c is None else c,16)
    k(f"v_mfma_f32_32x32x16_bf16 {vr(d,16)}, {vr(a,4)}, {vr(b,4)}, {cc}")
def bf16r(k,x,t):
    k(f"v_cvt_pk_bf16_f32 v{t}, v{x}, v{x}\nv_lshlrev_b32 v{x}, 16, v{t}")

def k1():
    k=Kern("qkv_kernel",256)
    vm=VM(k)
    sX,sW,sWS=12,16,20
    k(f"""
    s_cmp_ge_u32 s2, 256
    s_cbranch_scc1 qkv_done
    s_load_dwordx4 s[4:7], s[0:1], 0
    s_load_dwordx2 s[8:9], s[0:1], 64
    v_lshrrev_b32 v2, 6, v0
    v_and_b32 v1, 63, v0
    s_and_b32 s24, s2, 7
    s_lshr_b32 s25, s2, 3
    v_readfirstlane_b32 s26, v2
    s_mov_b32 s29, {hex(ONES)}
    s_lshr_b32 s27, s26, 1
    s_and_b32 s28, s26, 1
    """)
    vX0,vX1,vWs,vXS=3,4,5,6
    t0,t1,t2,t3=7,8,9,10
    vR,vH=11,12
    XA=16; WA=28
    XF=[40,44]; WF=[48,60]
    AQ,AK,AV=72,88,104
    SX,SXX,CS=120,122,124
    XS=128
    k(f"""
    v_and_b32 v{vR}, 31, v1
    v_lshrrev_b32 v{vH}, 5, v1
    v_lshrrev_b32 v{t0}, 3, v1          ; i>>3
    v_and_b32 v{t1}, 7, v1              ; p
    v_lshrrev_b32 v{t2}, 4, v1          ; i>>4
    v_xor_b32 v{t3}, v{t1}, v{t2}
    v_lshlrev_b32 v{t3}, 4, v{t3}
    s_lshl_b32 s30, s25, 6
    s_lshl_b32 s31, s26, 4
    s_add_u32 s30, s30, s31             ; 64rb+16w
    v_add_u32 v{vX0}, s30, v{t0}
    v_lshl_add_u32 v{vX0}, v{vX0}, 10, v{t3}
    v_xor_b32 v{vX1}, 64, v{vX0}
    v_add_u32 v{vX1}, {8*1024-1024}, v{vX1}
    v_and_b32 v{t2}, 1, v{t2}
    v_lshlrev_b32 v{t2}, 2, v{t2}
    v_xor_b32 v{t3}, v{t1}, v{t2}
    v_lshlrev_b32 v{t3}, 4, v{t3}
    v_add_u32 v{t0}, s31, v{t0}         ; 16w + (i>>3)
    v_mul_u32_u24 v{vWs}, 3072, v{t0}
    s_lshl_b32 s32, s24, 7
    v_add3_u32 v{vWs}, v{vWs}, v{t3}, s32
    s_lshl_b32 s30, s25, 6
    s_lshl_b32 s33, s27, 5
    s_add_u32 s30, s30, s33
    v_add_u32 v{vXS}, s30, v{vR}
    v_lshlrev_b32 v{vXS}, 10, v{vXS}
    s_lshl_b32 s33, s28, 6
    s_add_u32 s33, s33, s32
    v_lshl_add_u32 v{t0}, v{vH}, 4, s33
    v_add_u32 v{vXS}, v{vXS}, v{t0}
    s_waitcnt lgkmcnt(0)
    """)
    srd(k,sX,4,0x200000); srd(k,sW,6,0x180000); srd(k,sWS,8,WS_END)
    NS=5
    k(f"""
    s_lshl_b32 s34, s26, 11
    s_mul_i32 s35, s26, 6144
    s_add_u32 s35, s35, 8192
    """)
    def dma_chunk(c):
        slot=(c%NS)*32768
        L=[]
        L.append((f"s_add_u32 m0, s34, {slot}",None))
        L.append((f"s_mov_b32 s36, {c*128}",None))
        L.append((f"buffer_load_dwordx4 v{vX0}, s[{sX}:{sX+3}], s36 offen lds",c))
        L.append((f"buffer_load_dwordx4 v{vX1}, s[{sX}:{sX+3}], s36 offen offset:1024 lds",c))
        for u in range(2):
            L.append((f"s_add_u32 m0, s35, {slot+u*3072}",None))
            L.append((f"s_mov_b32 s37, {(c*64+u*8)*3072}",None))
            for s in range(3):
                L.append((f"buffer_load_dwordx4 v{vWs}, s[{sW}:{sW+3}], s37 offen offset:{s*1024} lds",c))
        return L
    def emit(L):
        for t,tag in L:
            if tag is None: k(t)
            else: vm.issue(t,tag)
    emit(dma_chunk(0))
    vm.issue(f"buffer_load_dwordx4 {vr(XS,4)}, v{vXS}, s[{sX}:{sX+3}], 0 offen","xs")
    vm.issue(f"buffer_load_dwordx4 {vr(XS+4,4)}, v{vXS}, s[{sX}:{sX+3}], 0 offen offset:32","xs")
    for c in range(1,NS): emit(dma_chunk(c))
    k(f"""
    s_lshl_b32 s38, s27, 1
    s_or_b32 s38, s38, s28
    v_lshrrev_b32 v{t0}, 1, v{vR}
    v_and_b32 v{t0}, 7, v{t0}
    v_xor_b32 v{t0}, v{t0}, v{vH}       ; f ^ h
    v_lshlrev_b32 v{t0}, 4, v{t0}
    s_lshl_b32 s30, s27, 12
    v_lshl_add_u32 v{t1}, v{vR}, 7, s30
    v_add_u32 v{t0}, v{t0}, v{t1}       ; X base (j=0)
    ; W base
    v_and_b32 v{t1}, 15, v1             ; i
    v_lshrrev_b32 v{t2}, 2, v{t1}
    v_lshlrev_b32 v{t2}, 7, v{t2}       ; (i>>2)*128
    v_lshrrev_b32 v{t3}, 3, v{t1}
    v_xor_b32 v{t3}, s28, v{t3}
    v_lshl_add_u32 v{t2}, v{t3}, 6, v{t2}
    v_and_b32 v{t3}, 3, v{t1}
    v_lshl_add_u32 v{t2}, v{t3}, 3, v{t2}
    v_bfe_u32 v{t3}, v1, 4, 1
    v_lshl_add_u32 v{t2}, v{t3}, 5, v{t2}
    v_mul_u32_u24 v{t3}, 3072, v{vH}
    v_add_u32 v{t2}, v{t2}, v{t3}
    v_add_u32 v{t2}, 8192, v{t2}        ; W base (j=0)
    """)
    for p in range(4):
        k(f"""
        s_xor_b32 s30, s38, {p}
        s_lshl_b32 s31, s30, 5
        s_mul_i32 s30, s30, 6144
        v_xor_b32 v{XA+p}, s31, v{t0}
        v_add_u32 v{WA+p}, s30, v{t2}
        """)
        for g in (1,2):
            k(f"v_add_u32 v{XA+4*g+p}, {65536*g}, v{XA+p}\nv_add_u32 v{WA+4*g+p}, {65536*g}, v{WA+p}")
    for r in range(SX,SX+7): k(f"v_mov_b32 v{r}, 0")
    def reads(s):
        c,p=divmod(s,4); slot=c%NS; g=slot//2; imm=(slot%2)*32768; b=s&1
        L=[f"ds_read_b128 {vr(XF[b],4)}, v{XA+4*g+p} offset:{imm}"]
        for sg in range(3):
            for m in range(2):
                L.append(f"ds_read_b64_tr_b16 {vr(WF[b]+4*sg+2*m,2)}, v{WA+4*g+p} offset:{imm+sg*1024+m*512}")
        return L
    vm.wait(0); k("s_barrier")
    for t in reads(0): k(t)
    for s in range(32):
        c,p=divmod(s,4); b=s&1
        nxt=reads(s+1) if s<31 else []
        dma=[]
        if p==3 and s<31:
            vm.wait(c+1,"lgkmcnt(0)"); k("s_barrier")
            if c+NS<8: dma=dma_chunk(c+NS)
        else:
            k("s_waitcnt lgkmcnt(0)")
        dots=[]
        if p in (1,3):
            for i in range(4):
                dots.append(f"v_dot2_f32_bf16 v{SX+(i&1)}, v{XF[b]+i}, s29, v{SX+(i&1)}")
                dots.append(f"v_dot2_f32_bf16 v{SXX+(i&1)}, v{XF[b]+i}, v{XF[b]+i}, v{SXX+(i&1)}")
        if p in (0,1):
            for i in range(4):
                for sg in range(3):
                    dots.append(f"v_dot2_f32_bf16 v{CS+sg}, v{WF[b]+4*sg+i}, s29, v{CS+sg}")
        nd=len(dots); cz="0" if s==0 else None
        mfma(k,AQ,WF[b],XF[b],cz)
        for t in nxt[0:3]: k(t)
        emit(dma[0:4])
        for t in dots[:nd//3]: k(t)
        mfma(k,AK,WF[b]+4,XF[b],cz)
        for t in nxt[3:5]: k(t)
        emit(dma[4:9])
        for t in dots[nd//3:2*nd//3]: k(t)
        mfma(k,AV,XF[b],WF[b]+8,cz)
        for t in nxt[5:7]: k(t)
        emit(dma[9:])
        for t in dots[2*nd//3:]: k(t)
    S0=4*32768
    vA,vB,vC=13,14,15
    k(f"""
    v_add_f32 v{SX}, v{SX}, v{SX+1}
    v_add_f32 v{SXX}, v{SXX}, v{SXX+1}
    s_lshl_b32 s30, s26, 8
    s_add_u32 s30, s30, {S0}
    v_lshl_add_u32 v{vA}, v1, 2, s30
    ds_write_b32 v{vA}, v{SX}
    ds_write_b32 v{vA}, v{SXX} offset:1024
    ds_write_b32 v{vA}, v{CS} offset:2048
    ds_write_b32 v{vA}, v{CS+1} offset:3072
    ds_write_b32 v{vA}, v{CS+2} offset:4096
    s_lshl_b32 s30, s27, 9
    s_add_u32 s30, s30, {S0}
    v_lshl_add_u32 v{vA}, v{vR}, 2, s30
    s_lshl_b32 s30, s28, 8
    s_add_u32 s30, s30, {S0}
    v_lshl_add_u32 v{vB}, v{vR}, 2, s30
    s_waitcnt lgkmcnt(0)
    s_barrier
    """)
    T=136
    for q in range(2):
        for i,o in enumerate((0,128,256,384)): k(f"ds_read_b32 v{T+4*q+i}, v{vA} offset:{q*1024+o}")
    for q in range(3):
        for i,o in enumerate((0,128,512,640)): k(f"ds_read_b32 v{T+8+4*q+i}, v{vB} offset:{(2+q)*1024+o}")
    k("s_waitcnt lgkmcnt(0)")
    for q in range(5):
        k(f"v_add_f32 v{T+4*q}, v{T+4*q}, v{T+4*q+1}\nv_add_f32 v{T+4*q+2}, v{T+4*q+2}, v{T+4*q+3}")
    for q in range(5):
        k(f"v_add_f32 v{T+4*q}, v{T+4*q}, v{T+4*q+2}")
    vM,vV,vRS,vRQ=T,T+4,T+1,T+2
    cq,ck,cv=T+8,T+12,T+16
    k(f"""
    v_mul_f32 v{vM}, {hex(f2u(1/512))}, v{vM}
    v_mul_f32 v{vV}, {hex(f2u(1/512))}, v{vV}
    v_fma_f32 v{vV}, -v{vM}, v{vM}, v{vV}
    v_max_f32 v{vV}, 0, v{vV}
    """)
    bf16r(k,vM,t0); bf16r(k,vV,t1)
    k(f"v_add_f32 v{vV}, {hex(f2u(1e-5))}, v{vV}")
    bf16r(k,vV,t1)
    k(f"v_sqrt_f32 v{vV}, v{vV}")
    bf16r(k,vV,t1)
    k(f"""
    v_rcp_f32 v{vRS}, v{vV}
    s_lshl_b32 s30, s26, 10
    s_add_u32 s30, s30, {S0+8192}
    v_lshl_add_u32 v{vA}, v{vR}, 2, s30
    v_lshl_add_u32 v{vB}, v{vH}, 4, s30
    v_mul_f32 v{vRQ}, {hex(f2u(0.25*LOG2E))}, v{vRS}
    ds_write_b32 v{vA}, v{vM}
    ds_write_b32 v{vA}, v{vRS} offset:128
    ds_write_b32 v{vA}, v{cq} offset:256
    ds_write_b32 v{vA}, v{ck} offset:384
    s_waitcnt lgkmcnt(0)
    """)
    B=160
    for a in (2,3,0,1):
        for g in range(4): k(f"ds_read_b128 {vr(B+16*a+4*g,4)}, v{vB} offset:{a*128+g*32}")
    vm.wait("xs")
    U=224;
    for i in range(8):
        k(f"""
        v_lshlrev_b32 v{U}, 16, v{XS+i}
        v_and_b32 v{U+1}, 0xffff0000, v{XS+i}
        v_sub_f32 v{U}, v{U}, v{vM}
        v_sub_f32 v{U+1}, v{U+1}, v{vM}
        v_cvt_pk_bf16_f32 v{U+2}, v{U}, v{U+1}
        v_lshlrev_b32 v{U}, 16, v{U+2}
        v_and_b32 v{U+1}, 0xffff0000, v{U+2}
        v_mul_f32 v{U}, v{U}, v{vRS}
        v_mul_f32 v{U+1}, v{U+1}, v{vRS}
        v_cvt_pk_bf16_f32 v{XS+i}, v{U}, v{U+1}
        """)
    k(f"""
    s_lshl_b32 s30, s25, 1
    s_add_u32 s30, s30, s27
    s_lshl_b32 s31, s24, 2
    s_lshl_b32 s32, s28, 1
    s_add_u32 s31, s31, s32
    v_lshlrev_b32 v{vA}, 4, v1
    s_lshl_b32 s33, s30, 15
    s_lshl_b32 s34, s31, 10
    s_add_u32 s33, s33, s34
    s_add_u32 s33, s33, {XN}
    buffer_store_dwordx4 {vr(XS,4)}, v{vA}, s[{sWS}:{sWS+3}], s33 offen
    buffer_store_dwordx4 {vr(XS+4,4)}, v{vA}, s[{sWS}:{sWS+3}], s33 offen offset:1024
    s_lshl_b32 s33, s31, 16
    s_lshl_b32 s34, s30, 10
    s_add_u32 s40, s33, s34
    s_add_u32 s41, s40, 65536
    s_lshl_b32 s42, s40, 1
    s_add_u32 s42, s42, {KV}            ; K head0
    s_add_u32 s43, s42, 131072
    v_bfe_u32 v{t0}, v1, 4, 1
    v_lshlrev_b32 v{t0}, 17, v{t0}
    v_and_b32 v{t1}, 15, v1
    v_lshl_add_u32 v{t0}, v{t1}, 4, v{t0}
    v_lshl_add_u32 v{vC}, v{vH}, 8, v{t0}
    s_waitcnt lgkmcnt(8)
    """)
    P=232
    def fin(A,c1,c2,sc,stores,lane_cs):
        for i in range(16):
            if lane_cs: k(f"v_fma_f32 v{A+i}, -v{c1+i}, v{c2}, v{A+i}")
            else: k(f"v_fma_f32 v{A+i}, -v{c2}, v{c1+i}, v{A+i}")
        for i in range(16):
            k(f"v_mul_f32 v{A+i}, v{A+i}, v{sc+i if lane_cs else sc}")
        for u in range(2):
            for i in range(4): k(f"v_cvt_pk_bf16_f32 v{P+4*u+i}, v{A+8*u+2*i}, v{A+8*u+2*i+1}")
            k(stores[u].replace("DATA",vr(P+4*u,4)))
    fin(AQ,B+32,vM,vRQ,[f"buffer_store_dwordx4 DATA, v{vA}, s[{sWS}:{sWS+3}], s40 offen",f"buffer_store_dwordx4 DATA, v{vA}, s[{sWS}:{sWS+3}], s41 offen"],False)
    P=240
    fin(AK,B+48,vM,vRS,[f"buffer_store_dwordx4 DATA, v{vA}, s[{sWS}:{sWS+3}], s42 offen",f"buffer_store_dwordx4 DATA, v{vA}, s[{sWS}:{sWS+3}], s43 offen"],False)
    k("s_waitcnt lgkmcnt(0)")
    P=248
    fin(AV,B,cv,B+16,[f"buffer_store_dwordx4 DATA, v{vC}, s[{sWS}:{sWS+3}], s42 offen offset:1024",f"buffer_store_dwordx4 DATA, v{vC}, s[{sWS}:{sWS+3}], s42 offen offset:1536"],True)
    k("qkv_done:\ns_endpgm")
    return k

L_XN=0; L_H=65536; L_W=98304; L_CNT=147456; K2_LDS=147456+64
def spin(k,vA,vT,off,val,name):
    l=k.lab(name); d=k.lab(name+"d")
    k(f"""
    s_mov_b32 s61, 0x40000
    {l}:
    ds_read_b32 v{vT}, v{vA} offset:{off}
    s_waitcnt lgkmcnt(0)
    v_readfirstlane_b32 s60, v{vT}
    s_sub_u32 s61, s61, 1
    s_cbranch_scc1 {d}
    s_cmp_ge_u32 s60, {val}
    s_cbranch_scc1 {d}
    s_sleep 2
    s_branch {l}
    {d}:
    """)
def signal(k,vA,vT,off):
    k(f"""
    v_mov_b32 v{vT}, 1
    s_mov_b64 exec, 1
    ds_add_u32 v{vA}, v{vT} offset:{off}
    s_mov_b64 exec, -1
    """)

def k2():
    k=Kern("att_kernel",168)
    sWS,sW1,sW2=12,16,20
    k(f"""
    s_cmp_ge_u32 s2, 256
    s_cbranch_scc1 att_done
    s_load_dwordx4 s[4:7], s[0:1], 32
    s_load_dwordx2 s[8:9], s[0:1], 64
    v_lshrrev_b32 v2, 6, v0
    v_and_b32 v1, 63, v0
    v_mov_b32 v3, {L_CNT}
    v_mov_b32 v4, 0
    v_mov_b32 v5, 0
    v_readfirstlane_b32 s26, v2
    ds_write_b64 v3, v[4:5]
    s_and_b32 s24, s2, 7
    s_lshr_b32 s25, s2, 3
    s_waitcnt lgkmcnt(0)
    """)
    srd(k,sWS,8,WS_END); srd(k,sW1,4,0x1C0000); srd(k,sW2,6,0x1C0000)
    k(f"""
    s_barrier
    s_cmp_ge_u32 s26, 8
    s_cbranch_scc1 att_ffn
    """)
    vK,vV=2,4
    Q=8; KF=[24,28]; VF=[32,40]; S=[48,64]; P=80; O=88
    T=152
    k(f"""
    s_and_b32 s27, s25, 3
    s_lshl_b32 s28, s24, 2
    s_add_u32 s27, s27, s28             ; head
    s_lshr_b32 s28, s25, 2
    s_and_b32 s29, s26, 3               ; kq
    s_lshr_b32 s30, s26, 2              ; qh
    s_lshl_b32 s31, s28, 3
    s_lshl_b32 s32, s30, 2
    s_add_u32 s31, s31, s32
    s_lshl_b32 s33, s27, 16
    v_lshlrev_b32 v{vK}, 4, v1
    s_lshl_b32 s38, s27, 17
    s_add_u32 s38, s38, {KV}
    s_lshl_b32 s39, s29, 15
    s_add_u32 s39, s39, s38
    buffer_load_dwordx4 {vr(KF[0],4)}, v{vK}, s[{sWS}:{sWS+3}], s39 offen
    """)
    for u in range(4):
        k(f"""
        s_add_u32 s34, s29, {u}
        s_and_b32 s34, s34, 3
        s_add_u32 s34, s34, s31
        s_lshl_b32 s34, s34, 10
        s_add_u32 s34, s34, s33
        buffer_load_dwordx4 {vr(Q+4*u,4)}, v{vK}, s[{sWS}:{sWS+3}], s34 offen
        """)
    k(f"""
    v_and_b32 v5, 15, v1
    v_lshrrev_b32 v6, 5, v1
    v_lshlrev_b32 v6, 8, v6
    v_lshl_add_u32 v{vV}, v5, 4, v6
    v_and_b32 v5, 27, v1
    v_cmp_eq_u32 vcc, 16, v5
    v_mov_b32 v6, {hex(ONES)}
    s_mov_b32 s40, 0xffff
    s_mov_b32 s41, 0xffff
    v_cndmask_b32 v5, 0, v6, vcc
    """)
    for i in range(16): k(f"v_mov_b32 v{VF[0]+i}, v5")
    k(f"""
    s_mov_b64 exec, s[40:41]
    buffer_load_dwordx4 {vr(VF[0],4)}, v{vV}, s[{sWS}:{sWS+3}], s39 offen offset:1024
    buffer_load_dwordx4 {vr(VF[0]+4,4)}, v{vV}, s[{sWS}:{sWS+3}], s39 offen offset:1536
    s_mov_b64 exec, -1
    s_add_u32 s39, s39, 2048
    """)
    for i in range(64): k(f"v_mov_b32 v{O+i}, 0")
    for i in range(4,8): k(f"v_mov_b32 v{P+i}, 0")
    k(f"v_mov_b32 v{S[1]+14}, 0\nv_mov_b32 v{S[1]+15}, 0")
    k("s_mov_b32 s42, 8\ns_waitcnt vmcnt(0)")
    mfma(k,S[0],KF[0],Q,"0")
    k("s_nop 7\ns_nop 3")
    k(".p2align 6\natt_loop:")
    def slot(par,t):
        Sc=S[t&1]; Sn=S[(t+1)&1]
        e=lambda i:k(f"v_exp_f32 v{Sc+i}, v{Sc+i}")
        c=lambda j:k(f"v_cvt_pk_bf16_f32 v{P+j}, v{Sc+2*j}, v{Sc+2*j+1}")
        Vp=VF[par] if t>0 else VF[1-par]
        e(0); k(f"v_cvt_pk_bf16_f32 v{P+7}, v{Sn+14}, v{Sn+15}"); e(1); e(2)
        mfma(k,O+16*((t-1)&3),Vp+4,P+4)
        if t==0: k(f"buffer_load_dwordx4 {vr(KF[1-par],4)}, v{vK}, s[{sWS}:{sWS+3}], s39 offen")
        e(3); c(0); e(4); e(5); c(1)
        if t==3: k("s_waitcnt vmcnt(0)")
        mfma(k,Sn,KF[par] if t<3 else KF[1-par],Q+4*((t+1)&3),"0")
        if t==0:
            k(f"""
            s_mov_b64 exec, s[40:41]
            buffer_load_dwordx4 {vr(VF[1-par],4)}, v{vV}, s[{sWS}:{sWS+3}], s39 offen offset:1024
            buffer_load_dwordx4 {vr(VF[1-par]+4,4)}, v{vV}, s[{sWS}:{sWS+3}], s39 offen offset:1536
            s_mov_b64 exec, -1
            s_add_u32 s39, s39, 2048
            """)
        e(6); e(7); c(2); e(8); e(9); c(3); e(10); e(11)
        mfma(k,O+16*t,VF[par],P)
        if par==1 and t==3: k("s_sub_u32 s42, s42, 1\ns_cmp_lg_u32 s42, 0")
        c(4); e(12); e(13); c(5); e(14); e(15); c(6)
    for par in range(2):
        for t in range(4): slot(par,t)
    k("s_cbranch_scc1 att_loop")
    k(f"v_cvt_pk_bf16_f32 v{P+7}, v{S[1]+14}, v{S[1]+15}")
    mfma(k,O+48,VF[1]+4,P+4)
    k(f"""
    v_mov_b32 v3, {L_CNT}
    s_cmp_eq_u32 s24, 7
    s_cbranch_scc1 att_nowait
    """)
    spin(k,3,5,4,4,"wb")
    k("att_nowait:")
    BLK=2304
    for u in (1,2,3):
        k(f"""
        s_add_u32 s34, s29, {u}
        s_and_b32 s34, s34, 3
        s_lshl_b32 s35, s30, 2
        s_add_u32 s34, s34, s35
        s_mul_i32 s34, s34, {3*BLK}
        s_add_u32 s34, s34, {(3-u)*BLK}
        v_add_u32 v5, s34, v{vK}
        v_lshl_add_u32 v6, v1, 2, s34
        ds_write_b128 v5, {vr(O+16*u,4)}
        ds_write_b128 v5, {vr(O+16*u+4,4)} offset:1024
        ds_write_b32 v6, v{O+16*u+8} offset:2048
        """)
    k(f"""
    s_lshl_b32 s35, s30, 2
    s_add_u32 s34, s29, s35
    s_mul_i32 s34, s34, {3*BLK}
    v_add_u32 v5, s34, v{vK}
    v_lshl_add_u32 v6, v1, 2, s34
    s_waitcnt lgkmcnt(0)
    s_barrier
    """)
    R=S[0]
    for j in range(3):
        k(f"""
        ds_read_b128 {vr(R+12*j,4)}, v5 offset:{j*BLK}
        ds_read_b128 {vr(R+12*j+4,4)}, v5 offset:{j*BLK+1024}
        ds_read_b32 v{R+12*j+8}, v6 offset:{j*BLK+2048}
        """)
    for j in range(3):
        k(f"s_waitcnt lgkmcnt({6-3*j})")
        for i in range(9): k(f"v_add_f32 v{O+i}, v{O+i}, v{R+12*j+i}")
    LO=f2u(2.0**-60); HI=f2u(2.0**60)
    k(f"""
    v_max3_f32 v{T}, abs(v{O}), abs(v{O+1}), abs(v{O+2})
    v_max3_f32 v{T+1}, abs(v{O+3}), abs(v{O+4}), abs(v{O+5})
    v_max3_f32 v{T}, abs(v{O+6}), abs(v{O+7}), v{T}
    v_add_f32 v{T+2}, v{O}, v{O+1}
    v_add_f32 v{T+3}, v{O+2}, v{O+3}
    v_add_f32 v{T+4}, v{O+4}, v{O+5}
    v_add_f32 v{T+5}, v{O+6}, v{O+7}
    v_max_f32 v{T}, v{T}, v{T+1}
    v_add_f32 v{T+2}, v{T+2}, v{T+3}
    v_add_f32 v{T+4}, v{T+4}, v{T+5}
    s_mov_b32 s44, {hex(LO)}
    s_mov_b32 s45, {hex(HI)}
    s_mov_b32 s48, 0x7f000000
    v_add_f32 v{T+2}, v{T+2}, v{T+4}
    v_cmp_le_f32 vcc, s44, v{O+8}
    v_cmp_ge_f32 s[46:47], s45, v{O+8}
    s_and_b64 vcc, vcc, s[46:47]
    v_cmp_gt_f32 s[46:47], s48, v{T}
    s_and_b64 vcc, vcc, s[46:47]
    v_cmp_o_f32 s[46:47], v{T+2}, v{T+2}
    s_and_b64 vcc, vcc, s[46:47]
    s_cmp_eq_u64 vcc, -1
    s_cbranch_scc0 att_slow
    att_fin:
    v_rcp_f32 v{T}, v{O+8}
    s_add_u32 s34, s31, s29
    s_lshl_b32 s34, s34, 15
    s_lshl_b32 s35, s27, 10
    s_add_u32 s34, s34, s35
    s_add_u32 s34, s34, {OF}
    """)
    for i in range(8): k(f"v_mul_f32 v{O+i}, v{O+i}, v{T}")
    for i in range(4): k(f"v_cvt_pk_bf16_f32 v{P+i}, v{O+2*i}, v{O+2*i+1}")
    k(f"""
    buffer_store_dwordx4 {vr(P,4)}, v{vK}, s[{sWS}:{sWS+3}], s34 offen
    s_endpgm
    """)
    C=O+16
    k(f"""
    att_slow:
    v_mov_b32 v{T}, 0xff800000
    s_mov_b32 s39, s38
    s_mov_b32 s42, 64
    att_slow1:
    buffer_load_dwordx4 {vr(KF[0],4)}, v{vK}, s[{sWS}:{sWS+3}], s39 offen
    s_add_u32 s39, s39, 2048
    s_waitcnt vmcnt(0)
    """)
    mfma(k,S[0],KF[0],Q,"0")
    for i in range(8): k(f"v_max3_f32 v{T}, v{S[0]+2*i}, v{S[0]+2*i+1}, v{T}")
    k(f"""
    s_sub_u32 s42, s42, 1
    s_cmp_lg_u32 s42, 0
    s_cbranch_scc1 att_slow1
    v_mov_b32 v{T+1}, v{T}
    v_permlane32_swap_b32 v{T}, v{T+1}
    v_max_f32 v{T}, v{T}, v{T+1}
    """)
    for i in range(16): k(f"v_sub_f32 v{C+i}, 0, v{T}\nv_mov_b32 v{O+i}, 0")
    k(f"""
    s_mov_b32 s39, s38
    s_mov_b32 s42, 64
    att_slow2:
    buffer_load_dwordx4 {vr(KF[0],4)}, v{vK}, s[{sWS}:{sWS+3}], s39 offen
    s_mov_b64 exec, s[40:41]
    buffer_load_dwordx4 {vr(VF[0],4)}, v{vV}, s[{sWS}:{sWS+3}], s39 offen offset:1024
    buffer_load_dwordx4 {vr(VF[0]+4,4)}, v{vV}, s[{sWS}:{sWS+3}], s39 offen offset:1536
    s_mov_b64 exec, -1
    s_add_u32 s39, s39, 2048
    s_waitcnt vmcnt(0)
    """)
    mfma(k,S[0],KF[0],Q,C)
    for i in range(16): k(f"v_exp_f32 v{S[0]+i}, v{S[0]+i}")
    for j in range(8): k(f"v_cvt_pk_bf16_f32 v{P+j}, v{S[0]+2*j}, v{S[0]+2*j+1}")
    mfma(k,O,VF[0],P); mfma(k,O,VF[0]+4,P+4)
    k(f"""
    s_sub_u32 s42, s42, 1
    s_cmp_lg_u32 s42, 0
    s_cbranch_scc1 att_slow2
    s_nop 7
    s_nop 7
    s_branch att_fin
    """)
    vm=VM(k)
    vL,vW1a,vW1b,vW2a,vW2b=2,4,5,6,7
    vTA=[8,9]; vTB=[10,11]; vXr=12; t0,t1,t2,t3=13,14,15,16
    XF=[20,28]; WF=[36,44]; AC=52; PK=116
    k(f"""
    att_ffn:
    s_cmp_eq_u32 s24, 7
    s_cbranch_scc1 att_done
    s_sub_u32 s26, s26, 8               ; fw
    v_lshlrev_b32 v{vL}, 4, v1
    s_lshl_b32 s27, s25, 16
    s_lshl_b32 s28, s26, 14
    s_add_u32 s27, s27, s28
    s_add_u32 s27, s27, {XN}
    v_lshrrev_b32 v{t0}, 3, v1
    v_and_b32 v{t1}, 7, v1
    v_bfe_u32 v{t2}, v1, 4, 1
    v_lshlrev_b32 v{t2}, 2, v{t2}
    v_xor_b32 v{t1}, v{t1}, v{t2}
    v_lshlrev_b32 v{t1}, 4, v{t1}
    v_mul_u32_u24 v{vW1a}, 3584, v{t0}
    s_lshl_b32 s29, s24, 9
    s_lshl_b32 s30, s26, 7
    s_add_u32 s29, s29, s30
    v_add3_u32 v{vW1a}, v{vW1a}, v{t1}, s29
    v_add_u32 v{vW1b}, {8*3584-1024}, v{vW1a}
    v_lshl_add_u32 v{vW2a}, v{t0}, 10, v{t1}
    s_lshl_b32 s30, s26, 8
    v_add_u32 v{vW2a}, s30, v{vW2a}
    v_add_u32 v{vW2b}, {8*1024-1024}, v{vW2a}
    s_mul_i32 s31, s26, 12288
    s_add_u32 s31, s31, {L_W}
    s_lshl_b32 s32, s24, 18
    """)
    D=6
    def wdma(g):
        L=[(f"s_add_u32 m0, s31, {(g%D)*2048}",None)]
        if g<32:
            L.append((f"s_mov_b32 s33, {g*16*3584}",None))
            L.append((f"buffer_load_dwordx4 v{vW1a}, s[{sW1}:{sW1+3}], s33 offen lds",g))
            L.append((f"buffer_load_dwordx4 v{vW1b}, s[{sW1}:{sW1+3}], s33 offen offset:1024 lds",g))
        else:
            p,ks=divmod(g-32,16)
            L.append((f"s_add_u32 s33, s32, {ks*16*1024+p*128}",None))
            L.append((f"buffer_load_dwordx4 v{vW2a}, s[{sW2}:{sW2+3}], s33 offen lds",g))
            L.append((f"buffer_load_dwordx4 v{vW2b}, s[{sW2}:{sW2+3}], s33 offen offset:1024 lds",g))
        return L
    def emit(L):
        for t,tag in L:
            if tag is None: k(t)
            else: vm.issue(t,tag)
    for grp in range(4):
        k(f"s_add_u32 m0, s28, {grp*4096}\ns_add_u32 s33, s27, {grp*4096}")
        for i in range(4): vm.issue(f"buffer_load_dwordx4 v{vL}, s[{sWS}:{sWS+3}], s33 offen offset:{i*1024} lds","xn")
    for g in range(D): emit(wdma(g))
    k(f"""
    v_and_b32 v{t0}, 15, v1
    v_lshrrev_b32 v{t1}, 2, v{t0}
    v_lshlrev_b32 v{t1}, 7, v{t1}
    v_lshrrev_b32 v{t2}, 3, v{t0}
    v_lshl_add_u32 v{t1}, v{t2}, 6, v{t1}
    v_and_b32 v{t2}, 3, v{t0}
    v_lshl_add_u32 v{t1}, v{t2}, 3, v{t1}
    v_bfe_u32 v{t2}, v1, 4, 1
    v_lshl_add_u32 v{t1}, v{t2}, 5, v{t1}
    v_add_u32 v{t1}, s31, v{t1}
    v_lshrrev_b32 v{t2}, 5, v1
    v_lshl_add_u32 v{vTA[0]}, v{t2}, 10, v{t1}
    v_lshl_add_u32 v{vTB[0]}, v{t2}, 9, v{t1}
    v_xor_b32 v{vTA[1]}, 64, v{vTA[0]}
    v_xor_b32 v{vTB[1]}, 64, v{vTB[0]}
    v_add_u32 v{vXr}, {L_H}, v{vL}
    v_mov_b32 v3, {L_CNT}
    """)
    vm.wait("xn")
    signal(k,3,t0,0)
    spin(k,3,t0,0,4,"wa")
    def reads(g):
        b=g&1; sl=(g%D)*2048; L=[]
        for rt in range(2):
            if g<32: L.append(f"ds_read_b128 {vr(XF[b]+4*rt,4)}, v{vL} offset:{rt*32768+g*1024}")
            else: L.append(f"ds_read_b128 {vr(XF[b]+4*rt,4)}, v{vXr} offset:{rt*16384+((g-32)%16)*1024}")
        for t in range(2):
            for m in range(2):
                if g<32: L.append(f"ds_read_b64_tr_b16 {vr(WF[b]+4*t+2*m,2)}, v{vTA[t]} offset:{sl+m*512}")
                else: L.append(f"ds_read_b64_tr_b16 {vr(WF[b]+4*t+2*m,2)}, v{vTB[t]} offset:{sl+m*1024}")
        return L
    def gemm_pass(g0,g1):
        vm.wait(g0)
        for t in reads(g0): k(t)
        for g in range(g0,g1):
            b=g&1
            nxt=reads(g+1) if g+1<g1 else []
            if nxt: vm.wait(g+1,"lgkmcnt(0)")
            else: k("s_waitcnt lgkmcnt(0)")
            dma=wdma(g+D) if g+D<64 else []
            for i in range(4):
                t,rt=i&1,i>>1
                mfma(k,AC+16*(2*rt+t),WF[b]+4*t,XF[b]+4*rt,"0" if g==g0 else None)
                if i<3:
                    for x in nxt[2*i:2*i+2]: k(x)
                else: emit(dma)
    gemm_pass(0,32)
    k(f"s_lshl_b32 s34, s26, 12\nv_add_u32 v{t1}, s34, v{vXr}")
    for rt in range(2):
        for t in range(2):
            A=AC+16*(2*rt+t); Pq=PK+8*(2*rt+t)
            for i in range(8): k(f"v_cvt_pk_bf16_f32 v{Pq+i}, v{A+2*i}, v{A+2*i+1}")
            for i in range(8): k(f"v_pk_max_i16 v{Pq+i}, v{Pq+i}, 0")
            for u in range(2): k(f"ds_write_b128 v{t1}, {vr(Pq+4*u,4)} offset:{rt*16384+(2*t+u)*1024}")
    k("s_waitcnt lgkmcnt(0)")
    signal(k,3,t0,4)
    spin(k,3,t0,4,4,"wc")
    k(f"""
    s_lshl_b32 s34, s24, 21
    s_lshl_b32 s35, s25, 16
    s_add_u32 s34, s34, s35
    s_lshl_b32 s35, s26, 14
    s_add_u32 s34, s34, s35
    s_add_u32 s34, s34, {FP}
    """)
    for p in range(2):
        gemm_pass(32+16*p,48+16*p)
        for rt in range(2):
            k(f"s_add_u32 s35, s34, {p*8192+rt*4096}")
            for t in range(2):
                A=AC+16*(2*rt+t); Pq=PK+8*(2*rt+t)
                for i in range(8): k(f"v_cvt_pk_bf16_f32 v{Pq+i}, v{A+2*i}, v{A+2*i+1}")
                for u in range(2): vm.issue(f"buffer_store_dwordx4 {vr(Pq+4*u,4)}, v{vL}, s[{sWS}:{sWS+3}], s35 offen offset:{t*2048+u*1024}","st")
    k("att_done:\ns_endpgm")
    return k

def k3():
    k=Kern("out_kernel",256)
    vm=VM(k)
    sX,sWO,sWS,sO=12,16,20,28
    vL,vO=2,3; vWo=4; vT=8; vXo=9; t0,t1,t2=10,11,12; vOr=13
    k(f"""
    s_cmp_ge_u32 s2, 256
    s_cbranch_scc1 out_done
    s_load_dwordx2 s[4:5], s[0:1], 0
    s_load_dwordx2 s[6:7], s[0:1], 16
    s_load_dwordx2 s[8:9], s[0:1], 64
    s_load_dwordx2 s[10:11], s[0:1], 48
    v_lshrrev_b32 v2, 6, v0
    v_and_b32 v1, 63, v0
    s_and_b32 s25, s2, 31               ; rb  (same xcd: rb%8 fixed)
    s_lshr_b32 s24, s2, 5               ; cb
    v_readfirstlane_b32 s26, v2
    v_lshlrev_b32 v{vL}, 4, v1
    s_lshr_b32 s27, s26, 1              ; wm
    s_and_b32 s32, s26, 1               ; wn
    v_lshrrev_b32 v{t0}, 3, v1
    v_and_b32 v{t1}, 7, v1
    v_bfe_u32 v{t2}, v1, 4, 1
    v_lshlrev_b32 v{t2}, 2, v{t2}
    v_xor_b32 v{t1}, v{t1}, v{t2}
    v_lshlrev_b32 v{t1}, 4, v{t1}
    v_lshl_add_u32 v{vWo}, v{t0}, 10, v{t1}
    s_lshl_b32 s33, s24, 7
    s_lshl_b32 s34, s26, 15
    s_add_u32 s33, s33, s34
    v_add_u32 v{vWo}, s33, v{vWo}
    v_add_u32 v{vWo+1}, {7168}, v{vWo}
    v_add_u32 v{vWo+2}, {2*7168}, v{vWo}
    v_add_u32 v{vWo+3}, {3*7168}, v{vWo}
    s_lshl_b32 s33, s25, 6
    s_lshl_b32 s34, s27, 5
    s_add_u32 s33, s33, s34
    v_and_b32 v{t0}, 31, v1
    v_add_u32 v{t0}, s33, v{t0}
    v_lshlrev_b32 v{t0}, 10, v{t0}
    s_lshl_b32 s33, s24, 7
    s_lshl_b32 s34, s32, 6
    s_add_u32 s33, s33, s34
    v_lshrrev_b32 v{t1}, 5, v1
    v_lshl_add_u32 v{t1}, v{t1}, 3, s33
    v_add_u32 v{vXo}, v{t0}, v{t1}
    s_waitcnt lgkmcnt(0)
    """)
    srd(k,sX,4,0x200000); srd(k,sWO,6,0x80000); srd(k,sWS,8,WS_END); srd(k,sO,10,0x200000)
    PT=32; XR=88; F=96; AC=112; OFr=[128,132]; WFr=[136,140]
    k(f"""
    s_lshl_b32 s33, s25, 16
    s_lshl_b32 s34, s24, 13
    s_add_u32 s33, s33, s34
    s_lshl_b32 s34, s26, 11
    s_add_u32 s33, s33, s34
    s_add_u32 s33, s33, {FP}
    s_lshl_b32 s35, s27, 15
    s_lshl_b32 s36, s32, 12
    s_add_u32 s35, s35, s36
    s_lshl_b32 s36, s25, 16
    s_add_u32 s36, s36, s35
    s_add_u32 s36, s36, {OF}
    s_lshl_b32 s37, s26, 12
    s_add_u32 s37, s37, 65536
    """)
    def chunk(ch):
        k(f"s_add_u32 m0, s35, {ch*8192}\ns_add_u32 s38, s36, {ch*8192}")
        for i in range(4): vm.issue(f"buffer_load_dwordx4 v{vL}, s[{sWS}:{sWS+3}], s38 offen offset:{i*1024} lds",ch)
        k(f"s_add_u32 m0, s37, {ch*16384}\ns_mov_b32 s38, {ch*128*1024}")
        for i in range(4): vm.issue(f"buffer_load_dwordx4 v{vWo+i}, s[{sWO}:{sWO+3}], s38 offen offset:{i*1024} lds",ch)
    for c in range(7):
        for u in range(2): vm.issue(f"buffer_load_dwordx4 {vr(PT+8*c+4*u,4)}, v{vL}, s[{sWS}:{sWS+3}], s33 offen offset:{u*1024}",f"p{c}")
        if c<6: k(f"s_add_u32 s33, s33, {1<<21}")
    for ch in range(4): chunk(ch)
    for g in range(4): vm.issue(f"buffer_load_dwordx2 {vr(XR+2*g,2)}, v{vXo}, s[{sX}:{sX+3}], 0 offen offset:{g*16}","x")
    k(f"""
    v_and_b32 v{t0}, 15, v1
    v_lshrrev_b32 v{t1}, 2, v{t0}
    v_lshlrev_b32 v{t1}, 7, v{t1}
    v_lshrrev_b32 v{t2}, 3, v{t0}
    v_xor_b32 v{t2}, s32, v{t2}
    v_lshl_add_u32 v{t1}, v{t2}, 6, v{t1}
    v_and_b32 v{t2}, 3, v{t0}
    v_lshl_add_u32 v{t1}, v{t2}, 3, v{t1}
    v_bfe_u32 v{t2}, v1, 4, 1
    v_lshl_add_u32 v{t1}, v{t2}, 5, v{t1}
    v_lshrrev_b32 v{t2}, 5, v1
    v_lshl_add_u32 v{t1}, v{t2}, 9, v{t1}
    v_add_u32 v{vT}, 65536, v{t1}
    s_lshl_b32 s38, s27, 15
    v_add_u32 v{vOr}, s38, v{vL}
    s_mov_b32 s40, 0x3f80
    s_mov_b32 s41, 0x3f800000
    """)
    for c in range(7):
        vm.wait(f"p{c}")
        for i in range(8):
            for hl in range(2):
                cc = "0" if c==0 else f"v{F+2*i+hl}"
                k(f"v_dot2_f32_bf16 v{F+2*i+hl}, v{PT+8*c+i}, s{40+hl}, {cc}")
    G=PT
    for i in range(16): k(f"v_mul_f32 v{G+i}, {hex(f2u(-LOG2E))}, v{F+i}")
    for i in range(16): k(f"v_exp_f32 v{G+i}, v{G+i}")
    for i in range(16): k(f"v_add_f32 v{G+i}, 1.0, v{G+i}")
    for i in range(16): k(f"v_rcp_f32 v{G+i}, v{G+i}")
    for i in range(16): k(f"v_mul_f32 v{G+i}, v{G+i}, v{F+i}")
    def reads(s):
        b=s&1
        return [f"ds_read_b128 {vr(OFr[b],4)}, v{vOr} offset:{s*1024}",
                f"ds_read_b64_tr_b16 {vr(WFr[b],2)}, v{vT} offset:{s*2048}",
                f"ds_read_b64_tr_b16 {vr(WFr[b]+2,2)}, v{vT} offset:{s*2048+1024}"]
    vm.wait(0); k("s_barrier")
    for t in reads(0): k(t)
    for s in range(32):
        b=s&1
        if s%8==7 and s<31:
            vm.wait(s//8+1,"lgkmcnt(0)"); k("s_barrier")
        else: k("s_waitcnt lgkmcnt(0)")
        mfma(k,AC,WFr[b],OFr[b],"0" if s==0 else None)
        if s<31:
            for t in reads(s+1): k(t)
    vm.wait("x")
    X=PT+16
    for i in range(8):
        k(f"v_lshlrev_b32 v{X+2*i}, 16, v{XR+i}\nv_and_b32 v{X+2*i+1}, 0xffff0000, v{XR+i}")
    for i in range(16): k(f"v_fma_f32 v{X+i}, v{AC+i}, v{G+i}, v{X+i}")
    for i in range(8): k(f"v_cvt_pk_bf16_f32 v{XR+i}, v{X+2*i}, v{X+2*i+1}")
    for g in range(4): k(f"buffer_store_dwordx2 {vr(XR+2*g,2)}, v{vXo}, s[{sO}:{sO+3}], 0 offen offset:{g*16}")
    k("out_done:\ns_endpgm")
    return k

def build(verbose=False, extra_empty=0):
    hdr=open(f"cdna_kernels/{NAME}.s.ref").read().split("; Override launch")[0]
    ks=[(k1(),256,163840),(k2(),768,K2_LDS),(k3(),256,131072)]
    out=hdr
    for kk,b,l in ks: out+=f"; @launch kernel={kk.name} grid=(256,1,1) block=({b},1,1) lds={l}\n"
    out+='.amdgcn_target "amdgcn-amd-amdhsa--gfx950"\n'
    for kk,b,l in ks:
        out+=kk.text(verbose)
        print(f"{kk.name}: {kk.ninstr} lines, max v{kk.maxv} s{kk.maxs}, {kk.nnops} pads",file=sys.stderr)
    return out
if __name__=="__main__":
    open(sys.argv[1] if len(sys.argv)>1 else f"cdna_kernels/{NAME}.s","w").write(build("-v" in sys.argv))
```
